```python
import torch

def _softmax(x, axis=-1):
    return torch.softmax(x, dim=axis)
def _gelu(x):
    return torch.nn.functional.gelu(x, approximate="tanh")
def _silu(x):
    return torch.nn.functional.silu(x)
def _sigmoid(x):
    return torch.sigmoid(x)
def _layernorm(x, axis=-1, eps=1e-5):
    m = x.mean(dim=axis, keepdim=True)
    v = x.var(dim=axis, keepdim=True, unbiased=False)
    return (x - m) / torch.sqrt(v + eps)
def _scatter_add(tgt, idx, src, axis=0):
    return tgt.clone().index_add_(axis, idx, src)
def _segment_sum(src, seg, n):
    out = torch.zeros((n,) + src.shape[1:], dtype=src.dtype)
    return out.index_add_(0, seg, src)
def _pad(x, pw):
    flat = tuple(v for pair in reversed(pw) for v in pair)
    return torch.nn.functional.pad(x, flat)

kernel_name = 'interleave_layers__ssm_conv_h3__glu_gated_glu__prompt'

def setup_inputs():

    _w = (lambda a: (lambda t: t.to(torch.bfloat16) if t.is_floating_point() else t)(torch.as_tensor(a)))
    def _A_setup():
        B, S, D = 1, 2048, 512
        ks = 4
        return {
            "q": _w((lambda *s: torch.randn(*s, dtype=torch.bfloat16) * 0.05)(B, S, D)),
            "k": _w((lambda *s: torch.randn(*s, dtype=torch.bfloat16) * 0.4)(B, S, D)),
            "v": _w((lambda *s: torch.randn(*s, dtype=torch.bfloat16) * 0.4)(B, S, D)),
            "shift_k": _w((lambda *s: torch.randn(*s, dtype=torch.bfloat16) * 0.4)(D, ks) * 0.5),
            "ssm_k": _w((lambda *s: torch.randn(*s, dtype=torch.bfloat16) * 0.4)(D, S) * (1.0 / S ** 0.5)),
            "ssm_D": _w((lambda *s: torch.randn(*s, dtype=torch.bfloat16) * 0.4)(D)),
        }
    _A_in = _A_setup()

    def _B_setup():
        B, S, D, F = 1, 2048, 512, 1792
        return {
            "x": _w((lambda *s: torch.randn(*s, dtype=torch.bfloat16) * 0.05)(B, S, D)),
            "w_gate": _w((lambda *s: torch.randn(*s, dtype=torch.bfloat16) * 0.05)(D, F)),
            "w_up": _w((lambda *s: torch.randn(*s, dtype=torch.bfloat16) * 0.05)(D, F)),
            "w_down": _w((lambda *s: torch.randn(*s, dtype=torch.bfloat16) * 0.05)(F, D)),
        }
    _B_in = _B_setup()

    return {
        "A_q": _A_in["q"],
        "A_k": _A_in["k"],
        "A_v": _A_in["v"],
        "A_shift_k": _A_in["shift_k"],
        "A_ssm_k": _A_in["ssm_k"],
        "A_ssm_D": _A_in["ssm_D"],
        "B_x": _B_in["x"],
        "B_w_gate": _B_in["w_gate"],
        "B_w_up": _B_in["w_up"],
        "B_w_down": _B_in["w_down"],
    }

def reference(A_q, A_k, A_v, A_shift_k, A_ssm_k, A_ssm_D, B_x, B_w_gate, B_w_up, B_w_down):
    def _A_ref(q, k, v, shift_k, ssm_k, ssm_D):
        B, S, D = q.shape
        ks = shift_k.shape[-1]
        k_pad = _pad(k, ((0, 0), (ks - 1, 0), (0, 0)))
        k_shift = torch.zeros_like(k)
        for t in range(ks):
            k_shift = k_shift + k_pad[:, t:t + S, :] * shift_k[:, ks - 1 - t][None, None, :]
        kv = k_shift * v
        L = 2 * S
        kv_pad = _pad(kv, ((0, 0), (0, S), (0, 0)))
        kf_pad = _pad(ssm_k, ((0, 0), (0, S)))
        kv_f = (lambda x, axes=(-2,-1): torch.fft.rfft2(x.float(), dim=axes))(kv_pad[:, None, :, :], axes=(1, 2))
        kf_f = (lambda x, axes=(-2,-1): torch.fft.rfft2(x.float(), dim=axes))(kf_pad[:, None, :], axes=(1, 2))
        kf_f = (lambda x, *d: x.permute(*d))(kf_f, 1, 2, 0)
        y_f = kv_f * kf_f[None, :, :, :]
        y = (lambda x, s, axes=(-2,-1): torch.fft.irfft2(x, s=s, dim=axes).to(torch.bfloat16))(y_f, (1, L), axes=(1, 2))[:, 0, :S, :]
        y = y + kv * ssm_D[None, None, :]
        return q * y

    def _B_ref(x, w_gate, w_up, w_down):
        g = torch.einsum("bsd,df->bsf", x, w_gate)
        u = torch.einsum("bsd,df->bsf", x, w_up)
        h = _sigmoid(g) * u
        return torch.einsum("bsf,fd->bsd", h, w_down)

    x = A_q
    x = x + _A_ref(_layernorm(x, axis=-1), A_k, A_v, A_shift_k, A_ssm_k, A_ssm_D)
    x = x + _B_ref(_layernorm(x, axis=-1), B_w_gate, B_w_up, B_w_down)
    x = x + _A_ref(_layernorm(x, axis=-1), A_k, A_v, A_shift_k, A_ssm_k, A_ssm_D)
    x = x + _B_ref(_layernorm(x, axis=-1), B_w_gate, B_w_up, B_w_down)
    return x
```

```python
from emit import E, vr, ar, sr

NAME = 'interleave_layers__ssm_conv_h3__glu_gated_glu__prompt'

KVT = 0x0000000
YB  = 0x0200000
X1  = 0x0400000
XN  = 0x0600000
HB  = 0x0800000
X2  = 0x1000000
X3  = 0x1200000
FL  = 0x1400000
TS  = 0x1500000
WS_BYTES = 0x10000000

S_Q, S_K, S_V, S_SH, S_SK, S_D, S_BX, S_WG, S_WU, S_WD, S_OUT, S_DBG, S_WS = range(4, 30, 2)
S_G, S_M = 30, 31
R_WS = 32
R_A, R_B, R_C, R_D = 36, 40, 44, 48
S_W = 52
S_T0 = 54

def srd(e, r, ptr, nbytes, off=None):
    if off is None:
        e(f's_mov_b32 s{r}, s{ptr}')
        e(f's_and_b32 s{r+1}, s{ptr+1}, 0xffff')
    else:
        e(f's_add_u32 s{r}, s{ptr}, {off}')
        e(f's_addc_u32 s{r+1}, s{ptr+1}, 0')
        e(f's_and_b32 s{r+1}, s{r+1}, 0xffff')
    e(f's_mov_b32 s{r+2}, {nbytes:#x}')
    e(f's_mov_b32 s{r+3}, 0x00020000')

def prologue(e, endlabel):
    e(f's_cmp_ge_u32 s2, 256')
    e(f's_cbranch_scc1 {endlabel}')
    e('s_load_dwordx16 s[4:19], s[0:1], 0')
    e('s_load_dwordx8 s[20:27], s[0:1], 64')
    e('s_load_dwordx2 s[28:29], s[0:1], 96')
    e(f'v_lshrrev_b32 v1, 6, v0')
    e(f's_and_b32 s{S_G}, s2, 7')
    e(f's_lshr_b32 s{S_M}, s2, 3')
    e(f'v_readfirstlane_b32 s{S_W}, v1')
    e('s_waitcnt lgkmcnt(0)')
    srd(e, R_WS, S_WS, WS_BYTES)

def kernel_text(name, lines):
    return f'.globl {name}\n.p2align 8\n.type {name},@function\n{name}:\n' + '\n'.join(lines) + '\n'

def kernel_desc(name, vg=512, acc=256, sg=102):
    return f""".p2align 6
.amdhsa_kernel {name}
  .amdhsa_next_free_vgpr {vg}
  .amdhsa_next_free_sgpr {sg}
  .amdhsa_accum_offset {acc}
  .amdhsa_group_segment_fixed_size 0
  .amdhsa_kernarg_size 104
  .amdhsa_user_sgpr_count 2
  .amdhsa_user_sgpr_kernarg_segment_ptr 1
  .amdhsa_system_sgpr_workgroup_id_x 1
.end_amdhsa_kernel
"""

LOG2E = 1.4426950408889634
LN2 = 0.6931471805599453
XN_SCALE = LOG2E

L_W1 = 0
L_S  = 131072
L_Y  = 155648

import struct
def f32(x):
    return '0x%08x' % struct.unpack('<I', struct.pack('<f', x))[0]
```

```python
import haz

class E:
    def __init__(self):
        self.L = []
        self.vm = 0
        self.lg = 0
        self.vm_done = 0
        self.lg_done = 0
        self.uid = 0
    def __call__(self, s):
        for line in s.split('\n'):
            t = line.strip()
            if not t:
                continue
            self.L.append(t)
            op = t.split()[0]
            if op.startswith('buffer_') or op.startswith('global_'):
                if op not in ('buffer_inv',):
                    self.vm += 1
            elif op.startswith('ds_'):
                self.lg += 1
    def c(self, s):
        self.L.append('; ' + s)
    def label(self, name):
        self.L.append(name + ':')
    def newlabel(self, p='L'):
        self.uid += 1
        return f'{p}_{self.uid}'
    def wvm(self, tag, cap=None):
        if tag <= self.vm_done:
            return
        n = self.vm - tag
        if cap is not None: n = min(n, cap)
        n = min(n, 63)
        self.L.append(f's_waitcnt vmcnt({n})')
        self.vm_done = self.vm - n
    def wlg(self, tag, cap=None):
        if tag <= self.lg_done:
            return
        n = self.lg - tag
        if cap is not None: n = min(n, cap)
        n = min(n, 15)
        self.L.append(f's_waitcnt lgkmcnt({n})')
        self.lg_done = self.lg - n
    def wall(self, vm=True, lg=True):
        p = []
        if vm: p.append('vmcnt(0)'); self.vm_done = self.vm
        if lg: p.append('lgkmcnt(0)'); self.lg_done = self.lg
        self.L.append('s_waitcnt ' + ' '.join(p))
    def forget(self):
        pass
    def text(self, fix=True):
        L, rep = haz.analyze(self.L, fix=fix)
        return L, rep

def vr(b, n=1):
    return f'v{b}' if n == 1 else f'v[{b}:{b+n-1}]'
def ar(b, n=1):
    return f'a{b}' if n == 1 else f'a[{b}:{b+n-1}]'
def sr(b, n=1):
    return f's{b}' if n == 1 else f's[{b}:{b+n-1}]'
```

```python
import re

REG_RE = re.compile(r'^(-|\|)?(abs\()?(-)?([vas])(\d+|\[(\d+):(\d+)\])\)?\|?$')

def parse_reg(tok):
    t = tok.strip()
    if t in ('vcc', 'vcc_lo', 'vcc_hi'):
        return {('s', 'vcc')}
    if t in ('exec', 'exec_lo', 'exec_hi'):
        return {('s', 'exec')}
    if t == 'm0':
        return {('s', 'm0')}
    t = t.lstrip('-')
    if t.startswith('abs(') and t.endswith(')'):
        t = t[4:-1]
    t = t.strip('|').lstrip('-')
    m = re.match(r'^([vas])(\d+)$', t)
    if m:
        return {(m.group(1), int(m.group(2)))}
    m = re.match(r'^([vas])\[(\d+):(\d+)\]$', t)
    if m:
        return {(m.group(1), i) for i in range(int(m.group(2)), int(m.group(3)) + 1)}
    return set()

TRANS = ('v_exp_f32', 'v_log_f32', 'v_rcp_f32', 'v_rsq_f32', 'v_sqrt_f32', 'v_sin_f32', 'v_cos_f32', 'v_rcp_iflag_f32')

class I:
    __slots__ = ('text', 'op', 'ops', 'mods', 'cls', 'w', 'r', 'ws', 'srcC', 'srcAB', 'passes', 'label', 'target',
                 'is_dpp', 'is_sdwa', 'is_lds_dma', 'wide_store_data', 'line', 'sreads_valu', 'lanesel')
    def __repr__(self):
        return self.text

def split_ops(s):
    out, depth, cur = [], 0, ''
    for ch in s:
        if ch in '[(':
            depth += 1
        if ch in '])':
            depth -= 1
        if ch == ',' and depth == 0:
            out.append(cur.strip()); cur = ''
        else:
            cur += ch
    if cur.strip():
        out.append(cur.strip())
    return out

def parse(text):
    ins = I()
    ins.text = text
    ins.label = None; ins.target = None
    ins.w = set(); ins.r = set(); ins.srcC = set(); ins.srcAB = set(); ins.passes = 0
    ins.is_dpp = ins.is_sdwa = ins.is_lds_dma = False
    ins.wide_store_data = set(); ins.ws = 1; ins.lanesel = set()
    t = text.split(';')[0].split('//')[0].strip()
    if not t:
        ins.cls = 'none'; ins.op = ''; ins.ws = 0; return ins
    if t.endswith(':'):
        ins.cls = 'label'; ins.label = t[:-1]; ins.op = ''; ins.ws = 0; return ins
    if t.startswith('.'):
        ins.cls = 'none'; ins.op = ''; ins.ws = 0; return ins
    parts = t.split(None, 1)
    op = parts[0]; rest = parts[1] if len(parts) > 1 else ''
    ins.op = op
    ops = split_ops(rest)
    mods = []
    if ops:
        last = ops[-1].split()
        if len(last) > 1:
            ops[-1] = last[0]; mods = last[1:]
    ins.ops = ops; ins.mods = mods
    R = [parse_reg(o) for o in ops]
    allm = ' '.join(mods)
    if op == 's_nop':
        ins.cls = 'nop'; ins.ws = int(ops[0], 0) + 1; return ins
    if op.startswith('s_cbranch') or op == 's_branch':
        ins.cls = 'branch'; ins.target = ops[0]
        if 'vcc' in op: ins.r = {('s', 'vcc')}
        if 'exec' in op: ins.r = {('s', 'exec')}
        return ins
    if op in ('s_endpgm',):
        ins.cls = 'end'; return ins
    if op in ('s_waitcnt', 's_barrier', 's_setprio', 's_sleep', 'buffer_wbl2', 'buffer_inv', 's_sethalt'):
        ins.cls = 'misc'; return ins
    if op.startswith('v_mfma'):
        ins.cls = 'mfma'
        ins.w = R[0]; ins.srcAB = R[1] | R[2]; ins.srcC = R[3]; ins.r = ins.srcAB | ins.srcC
        ins.passes = 8 if '32x32x16' in op else (4 if '16x16x32' in op else None)
        assert ins.passes, op
        return ins
    if op.startswith('s_load') or op.startswith('s_buffer_load') or op in ('s_memtime', 's_memrealtime'):
        ins.cls = 'smem'; ins.w = R[0]
        for x in R[1:]: ins.r |= x
        return ins
    if op.startswith('s_'):
        ins.cls = 'salu'
        if op.startswith('s_cmp') or op.startswith('s_bitcmp'):
            for x in R: ins.r |= x
        else:
            ins.w = R[0]
            for x in R[1:]: ins.r |= x
            if op in ('s_addk_i32', 's_mulk_i32'): ins.r |= R[0]
            if 'saveexec' in op:
                ins.w |= {('s', 'exec')}; ins.r |= {('s', 'exec')}
        return ins
    if op.startswith('ds_'):
        ins.cls = 'ds'
        if op.startswith('ds_read') or op.startswith('ds_bpermute') or op.startswith('ds_permute') or op.startswith('ds_swizzle'):
            ins.w = R[0]
            for x in R[1:]: ins.r |= x
        else:
            for x in R: ins.r |= x
        return ins
    if op.startswith('buffer_') or op.startswith('global_'):
        ins.cls = 'vmem'
        is_lds = ('lds' in mods) or ('_lds_' in op)
        ins.is_lds_dma = is_lds
        if 'load' in op and not is_lds:
            ins.w = R[0]
            for x in R[1:]: ins.r |= x
            if 'd16' in op: ins.r |= R[0]
        elif 'atomic' in op:
            for x in R: ins.r |= x
            if 'sc0' in mods: ins.w = R[0]
        else:
            for x in R: ins.r |= x
            if 'store' in op and ('x4' in op or 'x3' in op):
                ins.wide_store_data = R[0] if op.startswith('buffer_') else R[1]
        if is_lds: ins.r |= {('s', 'm0')}
        return ins
    if op.startswith('v_'):
        ins.cls = 'valu'
        ins.is_dpp = '_dpp' in op or any(m.startswith(('row_', 'quad_perm', 'wave_', 'row_bcast')) for m in mods)
        ins.is_sdwa = '_sdwa' in op or 'dst_sel' in allm
        base = op.replace('_e32', '').replace('_e64', '').replace('_dpp', '').replace('_sdwa', '')
        if base.startswith('v_cmpx'):
            ins.w = R[0] | {('s', 'exec')}
            for x in R[1:]: ins.r |= x
        elif base.startswith('v_cmp'):
            ins.w = R[0]
            for x in R[1:]: ins.r |= x
        elif base in ('v_readfirstlane_b32', 'v_readlane_b32'):
            ins.w = R[0]; ins.r = R[1]
            if base == 'v_readlane_b32':
                ins.lanesel = R[2]; ins.r |= R[2]
        elif base == 'v_writelane_b32':
            ins.w = R[0]; ins.r = R[0] | R[1] | R[2]; ins.lanesel = R[2]
        elif base.startswith('v_permlane') and 'swap' in base:
            ins.w = R[0] | R[1]; ins.r = R[0] | R[1]
        elif base in ('v_add_co_u32', 'v_sub_co_u32', 'v_subrev_co_u32', 'v_addc_co_u32', 'v_subb_co_u32', 'v_div_scale_f32', 'v_mad_u64_u32'):
            ins.w = R[0] | R[1]
            for x in R[2:]: ins.r |= x
        elif base == 'v_swap_b32':
            ins.w = R[0] | R[1]; ins.r = R[0] | R[1]
        else:
            ins.w = R[0]
            for x in R[1:]: ins.r |= x
            if base in ('v_fmac_f32', 'v_pk_fmac_f16', 'v_dot2c_f32_bf16', 'v_mac_f32') or ins.is_dpp or (ins.is_sdwa and 'UNUSED_PRESERVE' in allm):
                ins.r |= R[0]
            if base == 'v_cndmask_b32' and len(ops) == 3:
                ins.r |= {('s', 'vcc')}
        return ins
    raise ValueError('unknown instruction: ' + text)

def vregs(s):
    return {x for x in s if x[0] in 'va'}
def sregs(s):
    return {x for x in s if x[0] == 's'}

def need(p, c):
    n = 0; why = ''
    def up(k, w):
        nonlocal n, why
        if k > n: n = k; why = w
    pv = p.cls == 'valu'; cv = c.cls == 'valu'
    pbase = p.op.replace('_e32', '').replace('_e64', '')
    cbase = c.op.replace('_e32', '').replace('_e64', '').replace('_dpp', '').replace('_sdwa', '')
    if pv:
        pw_v = vregs(p.w); pw_s = sregs(p.w)
        if c.cls == 'mfma' and pw_v & c.r: up(2, 'valu->mfma')
        if c.cls == 'mfma' and ('s', 'exec') in pw_s: up(4, 'valu exec->mfma')
        if c.cls == 'vmem' and pw_s & sregs(c.r): up(5, 'valu sgpr->vmem')
        if cv:
            if c.is_dpp and pw_v & c.r: up(2, 'valu->dpp')
            if c.is_dpp and ('s', 'exec') in pw_s: up(5, 'valu exec->dpp')
            if pw_s & sregs(c.r): up(2, 'valu sgpr->valu const')
            if c.lanesel & pw_s: up(4, 'valu sgpr->lanesel')
            if cbase == 'v_div_fmas_f32' and ('s', 'vcc') in pw_s: up(4, 'vcc->div_fmas')
            if cbase in ('v_readfirstlane_b32', 'v_readlane_b32') and pw_v & c.r: up(1, 'valu->readlane')
            if cbase in ('v_readfirstlane_b32', 'v_readlane_b32', 'v_writelane_b32') and ('s', 'exec') in pw_s: up(4, 'exec->readlane')
            if cbase.startswith('v_permlane') and pw_v & c.r: up(2, 'valu->permlane')
            if cbase.startswith('v_permlane') and ('s', 'exec') in pw_s: up(4, 'cmpx->permlane')
            if pbase in TRANS and pw_v & c.r and cbase not in TRANS: up(1, 'trans->use')
            if pbase in TRANS and pw_v & c.r and cbase in TRANS: up(1, 'trans->trans use')
            if p.is_sdwa and pw_v & (c.r | c.w): up(1, 'sdwa dst->use')
            if 'op_sel' in ' '.join(p.mods) and not p.op.startswith('v_pk_') and pw_v & (c.r | c.w): up(1, 'opsel dst->use')
        if c.cls == 'branch' and pw_s & c.r: up(5, 'valu vcc/exec->branch (conservative)')
        if c.cls == 'salu' and pw_s & c.r: up(1, 'valu sgpr->salu (pad)')
        if pbase in TRANS and c.cls in ('vmem', 'ds') and pw_v & c.r: up(1, 'trans->mem')
    if p.cls == 'vmem' and p.wide_store_data:
        if cv and p.wide_store_data & c.w: up(2, 'wide store WAR valu')
        elif p.wide_store_data & c.w: up(1, 'wide store WAR')
    if p.cls == 'ds' and p.op in ('ds_write_b128', 'ds_write_b96') and cv:
        data = set()
        for o in p.ops[1:]: data |= parse_reg(o)
        if data & c.w: up(2, 'ds wide write WAR valu')
    if p.cls == 'salu' and ('s', 'm0') in p.w and c.is_lds_dma: up(1, 'm0->lds dma')
    if p.cls == 'mfma':
        P = p.passes
        D = p.w
        if c.cls == 'mfma':
            if D & c.srcC:
                if not (c.srcC == D and c.passes == P):
                    up({4: 6, 8: 10}[P], 'mfma D->partial C')
            if D & c.srcAB: up({4: 8, 8: 12}[P], 'mfma D->AB')
            if D & c.w and not (c.srcC == D and c.passes == P): up({4: 6, 8: 10}[P], 'mfma D WAW')
        elif c.cls in ('valu', 'vmem', 'ds'):
            if D & (c.r | c.w): up({4: 8, 8: 12}[P], 'mfma D->valu/mem')
            if cv and p.srcC & c.w: up({4: 3, 8: 7}[P], 'mfma C WAR')
    return n, why

MAXD = 20

def analyze(lines, fix=True, verbose=False):
    report = []
    ins = [parse(l) for l in lines]
    changed = True
    rounds = 0
    while changed:
        changed = False
        rounds += 1
        labels = {x.label: i for i, x in enumerate(ins) if x.cls == 'label'}
        preds = [[] for _ in ins]
        for i, x in enumerate(ins):
            if x.cls == 'branch':
                if x.target in labels: preds[labels[x.target]].append(i)
                if x.op != 's_branch' and i + 1 < len(ins): preds[i + 1].append(i)
            elif x.cls == 'end':
                pass
            elif i + 1 < len(ins):
                preds[i + 1].append(i)
        out = []
        last_fix = -100
        for i, c in enumerate(ins):
            if c.cls in ('none', 'label', 'nop', 'misc', 'end'):
                out.append(c); continue
            worst = 0; wwhy = ''; wp = None
            stack = [(j, 0) for j in preds[i]]
            seen = {}
            while stack:
                j, d = stack.pop()
                if d >= MAXD: continue
                if j in seen and seen[j] <= d: continue
                seen[j] = d
                p = ins[j]
                if p.cls not in ('none', 'label', 'nop', 'misc'):
                    k, why = need(p, c)
                    if k - d > worst: worst = k - d; wwhy = why; wp = p
                for q in preds[j]:
                    stack.append((q, d + p.ws))
            if worst > 0 and fix and i - last_fix < 25:
                changed = True
            elif worst > 0:
                report.append((c.text, wp.text, worst, wwhy))
                last_fix = i
                if fix:
                    k = worst
                    while k > 0:
                        t = min(k, 16)
                        out.append(parse(f's_nop {t-1}'))
                        k -= t
                    changed = True
            out.append(c)
        ins = out
        if not fix: break
        if rounds > 200: raise RuntimeError('hazard fix does not converge')
    return [x.text for x in ins], report
```

```python
from common import *

CB = 163840 - 43520
CS = 4288
HC = [CB, CB + 4 * CS]
XI = [CB + 8 * CS, CB + 8 * CS + 4608]

def conv_stream(e, hf, vA, vB, pool0, npool, acc0, lead=10):
    mf = []
    for rp in range(4):
        rho = 4 * hf + rp
        pairs = []
        for a in range(0, 9):
            for b in range(-1, 8):
                jt = a + b
                if jt < 0 or jt > 7: continue
                c = 8 * a + rho; q = 8 * b - rho
                if q < -8 or c > 64: continue
                pairs.append((a, b))
        pairs.sort(key=lambda p: (max(p[0], p[1] + (1 if rho == 0 else 0)), p[0]))
        for a, b in pairs:
            mf.append((a + b, ('A', 8 * a + rho), ('B', 8 * b - rho)))
    order = []; last = {}
    for i, (jt, A, B) in enumerate(mf):
        for k in (A, B):
            if k not in last: order.append(k)
            last[k] = i
    first = {}
    for i, (jt, A, B) in enumerate(mf):
        for k in (A, B):
            first.setdefault(k, i)
    free = list(range(npool))
    where = {}; tag = {}
    pend = []
    nxt = 0
    def queue_next():
        nonlocal nxt
        if nxt >= len(order) or not free: return False
        k = order[nxt]; nxt += 1
        s = free.pop(0); where[k] = s
        r = pool0 + 4 * s
        if k[0] == 'A':
            c = k[1]
            pend.append((k, f'ds_read_b64_tr_b16 v[{r}:{r+1}], v{vA} offset:{64*c+8}', False))
            pend.append((k, f'ds_read_b64_tr_b16 v[{r+2}:{r+3}], v{vA} offset:{64*c}', True))
        else:
            q = k[1]
            pend.append((k, f'ds_read_b128 v[{r}:{r+3}], v{vB} offset:{512+64*q}', True))
        return True
    def issue(n):
        for _ in range(n):
            if not pend:
                if not queue_next(): return
            k, t, lastp = pend.pop(0)
            e(t)
            if lastp: tag[k] = e.lg
    started = set()
    issue(8)
    for i, (jt, A, B) in enumerate(mf):
        while A not in tag or B not in tag:
            issue(1)
        e.wlg(max(tag[A], tag[B]), cap=None if i < 6 else 4)
        ra = pool0 + 4 * where[A]; rb = pool0 + 4 * where[B]
        d = acc0 + 4 * jt
        c = f'v[{d}:{d+3}]' if jt in started else '0'
        started.add(jt)
        e(f'v_mfma_f32_16x16x32_bf16 v[{d}:{d+3}], v[{ra}:{ra+3}], v[{rb}:{rb+3}], {c}')
        for k in (A, B):
            if last[k] == i: free.append(where[k])
        issue(2 if i < 12 else 1)
    return len(mf)

def phase_c(e, sc=''):
    e.c('---- phase C ----')
    T = S_T0
    e(f's_lshr_b32 s{T}, s{S_W}, 1')
    e(f's_and_b32 s{T+1}, s{S_W}, 1')
    e(f's_lshl_b32 s{T+2}, s{S_G}, 6')
    e(f's_lshl_b32 s{T+3}, s{S_M}, 1')
    e(f's_add_u32 s{T+2}, s{T+2}, s{T+3}')
    e(f's_add_u32 s{T+2}, s{T+2}, s{T}')
    e(f's_lshl_b32 s{T+3}, s{T+2}, 12')
    srd(e, R_A, S_SK, 4096, off=f's{T+3}')
    e(f's_lshl_b32 s{T+4}, s{T+2}, 1')
    e(f's_and_b32 s{T+4}, s{T+4}, 0xfffffffc')
    e(f's_load_dword s{T+5}, s[{S_D}:{S_D+1}], s{T+4}')
    e(f'v_and_b32 v1, 63, v0')
    e(f's_lshl_b32 s{T+6}, s{T+1}, 6')
    e(f'v_add_u32 v2, s{T+6}, v1')
    e(f'v_lshlrev_b32 v3, 4, v2')
    e(f'v_add_u32 v4, 0xfc, v1')
    e(f'v_add_u32 v5, -4, v1')
    e(f'v_cmp_gt_u32 vcc, 4, v1')
    e(f'v_cndmask_b32 v4, v4, v5, vcc')
    e(f'v_lshlrev_b32 v5, 4, v4')
    e(f'v_add_u32 v6, 16, v5')
    W = [10, 20, 30]
    e(f'buffer_load_dwordx4 v[{W[0]}:{W[0]+3}], v3, s[{R_A}:{R_A+3}], 0 offen')
    e(f'buffer_load_dwordx2 v[{W[0]+4}:{W[0]+5}], v3, s[{R_A}:{R_A+3}], 0 offen offset:16')
    t0 = e.vm
    e(f'buffer_load_dwordx4 v[{W[1]}:{W[1]+3}], v3, s[{R_A}:{R_A+3}], 0 offen offset:2048')
    e(f'buffer_load_dwordx2 v[{W[1]+4}:{W[1]+5}], v3, s[{R_A}:{R_A+3}], 0 offen offset:2064')
    t1 = e.vm
    e(f'buffer_load_dwordx4 v[{W[2]}:{W[2]+3}], v5, s[{R_A}:{R_A+3}], 0 offen')
    e(f'buffer_load_dwordx2 v[{W[2]+4}:{W[2]+5}], v6, s[{R_A}:{R_A+3}], 0 offen')
    t2 = e.vm
    e(f's_mul_i32 s{T+6}, s{T}, 4608')
    e(f's_lshl_b32 s{T+7}, s{T+1}, 11')
    e(f's_add_u32 s{T+8}, s{T+6}, s{T+7}')
    e(f's_add_u32 s{T+8}, s{T+8}, {XI[0] + 512}')
    e(f's_add_u32 s{T+9}, s{T+3}, s{T+7}')
    e(f's_add_u32 s{T+9}, s{T+9}, {KVT}')
    e(f'v_lshlrev_b32 v7, 4, v1')
    e(f's_mov_b32 m0, s{T+8}')
    e(f's_nop 0')
    e(f'buffer_load_dwordx4 v7, s[{R_WS}:{R_WS+3}], s{T+9} offen {sc} lds')
    e(f'buffer_load_dwordx4 v7, s[{R_WS}:{R_WS+3}], s{T+9} offen offset:1024 {sc} lds')
    e(f'v_and_b32 v8, 31, v1')
    e(f'v_lshlrev_b32 v8, 4, v8')
    e(f's_add_u32 s{T+8}, s{T+6}, {XI[0]}')
    e(f'v_add_u32 v8, s{T+8}, v8')
    for i in range(4): e(f'v_mov_b32 v{40+i}, 0')
    e(f'ds_write_b128 v8, v[40:43]')
    e(f's_mul_i32 s{T+10}, s{T}, {4*CS}')
    e(f's_add_u32 s{T+10}, s{T+10}, {HC[0] + 64}')
    e(f'v_add_u32 v9, s{T+10}, v3')
    e(f'v_add_u32 v16, s{T+10}, v5')
    def build(w, addr, off):
        A1, W2, A3 = 44, 48, 52
        for k in range(4): e(f'v_alignbit_b32 v{A1+k}, v{w+k+1}, v{w+k}, 16')
        for k in range(4): e(f'v_mov_b32 v{W2+k}, v{w+k+1}')
        for k in range(4): e(f'v_alignbit_b32 v{A3+k}, v{w+k+2}, v{w+k+1}, 16')
        e(f'ds_write_b128 v{addr}, v[{w}:{w+3}] offset:{off}')
        e(f'ds_write_b128 v{addr}, v[{A1}:{A1+3}] offset:{off+CS}')
        e(f'ds_write_b128 v{addr}, v[{W2}:{W2+3}] offset:{off+2*CS}')
        e(f'ds_write_b128 v{addr}, v[{A3}:{A3+3}] offset:{off+3*CS}')
    e.wvm(t0); build(W[0], 9, 0)
    e.wvm(t1); build(W[1], 9, 2048)
    e.wvm(t2)
    e(f'v_cmp_gt_u32 vcc, 6, v1')
    e(f's_and_saveexec_b64 s[{T+12}:{T+13}], vcc')
    build(W[2], 16, 0)
    e(f's_mov_b64 exec, s[{T+12}:{T+13}]')
    e(f'v_lshrrev_b32 v2, 4, v1')
    e(f'v_bfe_u32 v3, v1, 2, 2')
    e(f'v_and_b32 v4, 3, v1')
    e(f'v_sub_u32 v5, 4, v3')
    e(f'v_and_b32 v5, 3, v5')
    e(f'v_mul_u32_u24 v5, {CS}, v5')
    e(f'v_lshl_add_u32 v5, v4, 3, v5')
    e(f'v_lshlrev_b32 v6, 4, v2')
    e(f'v_sub_u32 v5, v5, v6')
    e(f'v_min_u32 v6, 1, v3')
    e(f'v_lshlrev_b32 v6, 3, v6')
    e(f'v_sub_u32 v5, v5, v6')
    e(f's_add_u32 s{T+10}, s{T+10}, -8')
    e(f'v_add_u32 v10, s{T+10}, v5')
    e(f'v_and_b32 v5, 15, v1')
    e(f'v_lshlrev_b32 v6, 5, v5')
    e(f'v_lshl_add_u32 v6, v2, 4, v6')
    e(f'v_add_u32 v11, s{T+8}, v6')
    e(f'v_lshlrev_b32 v6, 5, v5')
    e(f'v_lshl_add_u32 v6, v2, 3, v6')
    e(f'v_add_u32 v12, s{T+8}, v6')
    e(f'v_lshrrev_b32 v6, 1, v5')
    e(f'v_lshlrev_b32 v6, 15, v6')
    e(f'v_and_b32 v13, 1, v5')
    e(f'v_lshl_add_u32 v6, v13, 5, v6')
    e(f'v_lshl_add_u32 v13, v2, 3, v6')
    e(f's_lshl_b32 s{T+11}, s{T+2}, 6')
    e(f's_add_u32 s{T+11}, s{T+11}, {YB}')
    e(f's_add_u32 s{T+10}, s{T+10}, -56')
    e(f'v_lshl_add_u32 v14, v1, 4, s{T+10}')
    e.wall()
    e(f's_lshl_b32 s{T+6}, s{T+5}, 16')
    e(f's_and_b32 s{T+7}, s{T+5}, 0xffff0000')
    e(f's_bitcmp1_b32 s{T+2}, 0')
    e(f's_cselect_b32 s{T+5}, s{T+7}, s{T+6}')
    e(f's_barrier')
    ACC = 16; POOL = 48; NP = 40
    L1 = e.newlabel('C_hf1'); LJ = e.newlabel('C_join')
    e(f's_cmp_eq_u32 s{T+1}, 1')
    e(f's_cbranch_scc1 {L1}')
    save = (e.lg, e.lg_done, e.vm, e.vm_done)
    for hf in range(2):
        if hf == 1:
            e.label(L1)
            e.lg, e.lg_done, e.vm, e.vm_done = save
        conv_stream(e, hf, 10, 11, POOL, NP, ACC)
        e('s_barrier')
        keep = [4 * hf + i for i in range(4)]
        give = [4 * (1 - hf) + i for i in range(4)]
        for i, jt in enumerate(give):
            e(f'ds_write_b128 v14, v[{ACC+4*jt}:{ACC+4*jt+3}] offset:{(hf*4+i)*1024}')
        KV = POOL
        for i, jt in enumerate(keep):
            e(f'ds_read_b64 v[{KV+2*i}:{KV+2*i+1}], v12 offset:{512+512*jt}')
        e.wall(vm=False)
        e('s_barrier')
        PT = POOL + 8
        for i, jt in enumerate(keep):
            e(f'ds_read_b128 v[{PT+4*i}:{PT+4*i+3}], v14 offset:{((1-hf)*4+i)*1024}')
        KF = PT + 16
        for i in range(4):
            for d in range(2):
                e(f'v_lshlrev_b32 v{KF+4*i+2*d}, 16, v{KV+2*i+d}')
                e(f'v_and_b32 v{KF+4*i+2*d+1}, 0xffff0000, v{KV+2*i+d}')
        for i, jt in enumerate(keep):
            for r in range(4):
                e(f'v_fma_f32 v{ACC+4*jt+r}, v{KF+4*i+r}, s{T+5}, v{ACC+4*jt+r}')
        e.wall(vm=False)
        for i, jt in enumerate(keep):
            for r in range(4):
                e(f'v_add_f32 v{ACC+4*jt+r}, v{ACC+4*jt+r}, v{PT+4*i+r}')
            e(f'v_cvt_pk_bf16_f32 v{KV+2*i}, v{ACC+4*jt}, v{ACC+4*jt+1}')
            e(f'v_cvt_pk_bf16_f32 v{KV+2*i+1}, v{ACC+4*jt+2}, v{ACC+4*jt+3}')
            e(f's_add_u32 s{T+6}, s{T+11}, {jt*8*32768}')
            e(f'buffer_store_dwordx2 v[{KV+2*i}:{KV+2*i+1}], v13, s[{R_WS}:{R_WS+3}], s{T+6} offen')
        if hf == 0:
            e(f's_branch {LJ}')
    e.label(LJ)
```

```python
from common import *
from collections import deque

S_ODD = 70
S_HO = 72
S_XF, S_XS = 80, 81
V_A = 4
V_L16 = 8
RING0 = 16
ACC0 = 48
XR0 = 128

def w1_dma(e, T):
    e(f's_and_b32 s{S_ODD}, s{S_M}, 1')
    e(f's_lshr_b32 s{T}, s{S_M}, 1')
    e(f's_mul_i32 s{T}, s{T}, 112')
    e(f's_mul_i32 s{T+1}, s{S_ODD}, 48')
    e(f's_add_u32 s{T}, s{T}, s{T+1}')
    e(f's_lshl_b32 s{T}, s{T}, 1')
    e(f's_mul_i32 s{T+1}, s{S_ODD}, 3')
    e(f'v_lshrrev_b32 v2, 3, v1')
    e(f'v_bfe_u32 v3, v1, 1, 2')
    e(f'v_bfe_u32 v9, v1, 4, 1')
    e(f'v_lshlrev_b32 v9, 1, v9')
    e(f'v_xor_b32 v3, v3, v9')
    e(f'v_xor_b32 v3, s{T+1}, v3')
    e(f'v_xor_b32 v9, 1, v3')
    e(f'v_mul_u32_u24 v2, 3584, v2')
    e(f'v_and_b32 v10, 1, v1')
    e(f'v_lshl_add_u32 v2, v10, 4, v2')
    e(f'v_add_u32 v2, s{T}, v2')
    e(f'v_lshl_add_u32 v10, v3, 5, v2')
    e(f'v_lshl_add_u32 v11, v9, 5, v2')
    srd(e, R_A, S_WG, 512 * 3584)
    srd(e, R_B, S_WU, 512 * 3584)
    e(f's_mul_i32 s{T+2}, s{S_W}, {8*3584}')
    e(f's_lshl_b32 s{T+3}, s{S_W}, 10')
    for P in range(2):
        for i in range(16):
            e(f's_add_u32 m0, s{T+3}, {L_W1 + P*65536 + i*4096}')
            e(f's_add_u32 s{T+4}, s{T+2}, {i*4*8*3584}')
            e(f'buffer_load_dwordx4 v{10+P}, s[{(R_A, R_B)[P]}:{(R_A, R_B)[P]+3}], s{T+4} offen lds')
    return e.vm

def g1_setup(e, T):
    e(f's_and_b32 s{S_ODD}, s{S_M}, 1')
    e(f'v_bfe_u32 v2, v1, 4, 1')
    e(f'v_lshrrev_b32 v3, 5, v1')
    e(f'v_bfe_u32 v9, v1, 2, 2')
    e(f'v_lshl_add_u32 v3, v3, 3, v9')
    e(f'v_lshlrev_b32 v3, 7, v3')
    e(f'v_lshl_add_u32 v3, v2, 16, v3')
    e(f'v_and_b32 v10, 3, v1')
    e(f'v_lshl_add_u32 v3, v10, 3, v3')
    e(f'v_bfe_u32 v9, v1, 3, 1')
    e(f'v_lshl_add_u32 v9, v9, 1, v2')
    for ct in range(4):
        e(f'v_xor_b32 v10, {ct}, v9')
        e(f'v_lshl_add_u32 v{V_A+ct}, v10, 5, v3')
    if L_W1:
        for ct in range(4): e(f'v_add_u32 v{V_A+ct}, {L_W1}, v{V_A+ct}')
    e(f'v_lshlrev_b32 v{V_L16}, 4, v1')
    e(f's_lshl_b32 s{T}, s{S_G}, 3')
    e(f's_add_u32 s{T}, s{T}, s{S_W}')
    e(f's_lshl_b32 s{T+1}, s{S_ODD}, 2')
    e(f's_add_u32 s{T+2}, s{T}, s{T+1}')
    e(f's_xor_b32 s{T+1}, s{T+1}, 4')
    e(f's_add_u32 s{T+3}, s{T}, s{T+1}')
    e(f's_lshl_b32 s{S_XF}, s{T+2}, 15')
    e(f's_add_u32 s{S_XF}, s{S_XF}, {XN}')
    e(f's_lshl_b32 s{S_XS}, s{T+3}, 15')
    e(f's_add_u32 s{S_XS}, s{S_XS}, {XN}')
    e(f's_lshr_b32 s{T+4}, s{S_M}, 1')
    e(f's_mul_i32 s{T+4}, s{T+4}, 7')
    e(f's_mul_i32 s{T+5}, s{S_ODD}, 3')
    e(f's_add_u32 s{T+4}, s{T+4}, s{T+5}')
    e(f's_mul_i32 s{T+2}, s{T+2}, 114688')
    e(f's_mul_i32 s{T+3}, s{T+3}, 114688')
    for ct in range(4):
        e(f's_xor_b32 s{T+6}, s{T+5}, {ct}')
        e(f's_add_u32 s{T+6}, s{T+6}, s{T+4}')
        e(f's_lshl_b32 s{T+6}, s{T+6}, 10')
        e(f's_add_u32 s{T+6}, s{T+6}, {HB}')
        e(f's_add_u32 s{S_HO+ct}, s{T+6}, s{T+2}')
        if ct < 3: e(f's_add_u32 s{S_HO+4+ct}, s{T+6}, s{T+3}')

def epilogue_instrs(acc, sreg):
    L = []
    for p in range(4):
        a, b = acc + 2 * p, acc + 2 * p + 1
        L += [(f'v_exp_f32 v{a}, -v{a}', 2), (f'v_exp_f32 v{b}, -v{b}', 2),
              (f'v_add_f32 v{a}, 1.0, v{a}', 1), (f'v_add_f32 v{b}, 1.0, v{b}', 1),
              (f'v_rcp_f32 v{a}, v{a}', 2), (f'v_rcp_f32 v{b}, v{b}', 2),
              (f'v_mul_f32 v{a}, v{a}, v{a+8}', 1), (f'v_mul_f32 v{b}, v{b}, v{b+8}', 1)]
    for p in range(4):
        L.append((f'v_cvt_pk_bf16_f32 v{acc+p}, v{acc+2*p}, v{acc+2*p+1}', 1))
    L.append((f'buffer_store_dwordx4 v[{acc}:{acc+3}], v{V_L16}, s[{R_WS}:{R_WS+3}], s{sreg} offen', 1))
    return L

def phase_g1(e, sc='', lead=4, wait_every=2, budget=8, xf_issued=None):
    e.c('---- phase G1 ----')
    T = S_T0
    NR = lead + 2
    def xload(blk, j):
        base = S_XF if blk == 0 else S_XS
        if j % 4 == 0:
            if j == 0: e(f's_mov_b32 s{T+blk}, s{base}')
            else:      e(f's_add_u32 s{T+blk}, s{T+blk}, 4096')
        e(f'buffer_load_dwordx4 v[{XR0+4*j}:{XR0+4*j+3}], v{V_L16}, s[{R_WS}:{R_WS+3}], s{T+blk} offen offset:{1024*(j%4)} {sc}')
        return e.vm
    xt = {}
    for j in range(32):
        xt[(0, j)] = xload(0, j)
    mf = []
    for j in range(32):
        for ct in range(3): mf.append((ct, ct, 0, j))
    for j in range(32): mf.append((3, 3, 0, j))
    for j in range(32):
        for ct in range(2): mf.append((ct, ct, 1, j))
    for j in range(32): mf.append((2, 2, 1, j))
    n = len(mf)
    lastidx = {}
    for i, (a, ct, blk, j) in enumerate(mf): lastidx[(blk, ct)] = i
    done_at = {v: k for k, v in lastidx.items()}
    firstidx = {}
    for i, (a, ct, blk, j) in enumerate(mf): firstidx.setdefault((blk, ct), i)
    fill = deque()
    atag = {}
    def aread(i):
        a, ct, blk, j = mf[i]
        r = RING0 + 4 * (i % NR)
        e(f'ds_read_b64_tr_b16 v[{r}:{r+1}], v{V_A+ct} offset:{2048*j}')
        e(f'ds_read_b64_tr_b16 v[{r+2}:{r+3}], v{V_A+ct} offset:{2048*j+512}')
        atag[i] = e.lg
    for i in range(lead): aread(i)
    pending_epi = {}
    for i, (a, ct, blk, j) in enumerate(mf):
        used = 2
        if i + lead < n:
            aread(i + lead); used += 2
        if j == 0 and blk == 1:
            while any(f[3] == a for f in fill):
                t = fill.popleft(); e(t[0])
        if i % wait_every == 0:
            k = min(i + wait_every - 1, n - 1)
            before = len(e.L); e.wlg(atag[k]); used += len(e.L) - before
        key = (blk, j)
        before = len(e.L); e.wvm(xt[key]); used += len(e.L) - before
        d = ACC0 + 16 * a; r = RING0 + 4 * (i % NR)
        c = '0' if j == 0 else f'v[{d}:{d+15}]'
        e(f'v_mfma_f32_32x32x16_bf16 v[{d}:{d+15}], v[{r}:{r+3}], v[{XR0+4*j}:{XR0+4*j+3}], {c}')
        if blk == 0 and ct == 3:
            before = len(e.L); xt[(1, j)] = xload(1, j); used += len(e.L) - before
        if i in done_at:
            b, c2 = done_at[i]
            sreg = S_HO + (c2 if b == 0 else 4 + c2)
            for t, s in epilogue_instrs(d, sreg): fill.append((t, s, i + 3, a))
        while fill and fill[0][2] <= i and used + fill[0][1] <= budget:
            t = fill.popleft(); e(t[0]); used += t[1]
    while fill:
        t = fill.popleft(); e(t[0])
```

```python
from common import *
from collections import deque

S_HL = 82
S_OO = 83
V_G2L16 = 8
V_OUT = 9
V_REDW = 10
V_REDR = 13
G2_ACC = 16
G2_TMP = 80
G2_RING = 112
G2_NR = 36

def w2_addr_setup(e, T, stage_base, wave_stride):
    e(f'v_lshrrev_b32 v2, 3, v1')
    e(f'v_bfe_u32 v3, v1, 1, 2')
    e(f'v_bfe_u32 v14, v1, 4, 1')
    e(f'v_lshlrev_b32 v14, 1, v14')
    e(f'v_xor_b32 v3, v3, v14')
    e(f'v_lshlrev_b32 v3, 5, v3')
    e(f'v_and_b32 v14, 1, v1')
    e(f'v_lshl_add_u32 v3, v14, 4, v3')
    e(f'v_lshl_add_u32 v14, v2, 10, v3')
    e(f's_lshr_b32 s{T}, s{S_M}, 2')
    e(f's_lshl_b32 s{T}, s{T}, 7')
    e(f's_mul_i32 s{T+1}, s{S_W}, {448*1024}')
    e(f's_add_u32 s{T}, s{T}, s{T+1}')
    e(f'v_bfe_u32 v2, v1, 4, 1')
    e(f'v_lshlrev_b32 v2, 4, v2')
    e(f'v_and_b32 v3, 3, v1')
    e(f'v_lshl_add_u32 v2, v3, 2, v2')
    e(f's_lshl_b32 s{T+1}, s{S_W}, 3')
    e(f'v_add_u32 v2, s{T+1}, v2')
    e(f'v_and_b32 v2, 31, v2')
    e(f'v_lshrrev_b32 v3, 5, v1')
    e(f'v_bfe_u32 v15, v1, 2, 2')
    e(f'v_lshl_add_u32 v3, v3, 2, v15')
    e(f'v_lshrrev_b32 v15, 4, v2')
    e(f'v_bfe_u32 v4, v3, 1, 1')
    e(f'v_lshlrev_b32 v4, 1, v4')
    e(f'v_xor_b32 v15, v15, v4')
    e(f'v_and_b32 v2, 15, v2')
    e(f'v_lshlrev_b32 v2, 1, v2')
    e(f'v_lshl_add_u32 v2, v3, 7, v2')
    e(f's_mul_i32 s{T+1}, s{S_W}, {wave_stride}')
    e(f's_add_u32 s{T+1}, s{T+1}, {stage_base}')
    e(f'v_add_u32 v2, s{T+1}, v2')
    e(f'v_xor_b32 v4, 2, v15')
    e(f'v_lshl_add_u32 v15, v15, 5, v2')
    e(f'v_lshl_add_u32 v3, v4, 5, v2')
    return T, T + 1

def w2_load_standalone(e, T):
    srd(e, R_A, S_WD, 1792 * 1024)
    w2_addr_setup(e, T, 0, 28672)
    for rnd in range(2):
        for t in range(14):
            for hh in range(2):
                e(f's_add_u32 m0, s{T+1}, {t*2048 + hh*1024}')
                e(f's_add_u32 s{T+2}, s{T}, {((rnd*14+t)*16 + hh*8)*1024}')
                e(f'buffer_load_dwordx4 v14, s[{R_A}:{R_A+3}], s{T+2} offen lds')
        e.wall()
        for t in range(14):
            ft = rnd * 14 + t
            for cb in range(2):
                a = (ft * 2 + cb) * 4
                va = 15 if cb == 0 else 3
                e(f'ds_read_b64_tr_b16 a[{a}:{a+1}], v{va} offset:{t*2048}')
                e(f'ds_read_b64_tr_b16 a[{a+2}:{a+3}], v{va} offset:{t*2048+1024}')
        e.wall()

def g2_setup(e, T):
    e(f's_and_b32 s{T}, s{S_M}, 3')
    e(f's_lshl_b32 s{T+1}, s{S_G}, 3')
    e(f's_lshl_b32 s{T+2}, s{T}, 1')
    e(f's_add_u32 s{T+1}, s{T+1}, s{T+2}')
    e(f's_mul_i32 s{T+2}, s{T+1}, 114688')
    e(f's_mul_i32 s{T+3}, s{S_W}, {28*1024}')
    e(f's_add_u32 s{T+2}, s{T+2}, s{T+3}')
    e(f's_add_u32 s{S_HL}, s{T+2}, {HB}')
    e(f's_lshl_b32 s{T+1}, s{T+1}, 15')
    e(f's_lshr_b32 s{T+2}, s{S_M}, 2')
    e(f's_lshl_b32 s{T+2}, s{T+2}, 7')
    e(f's_add_u32 s{T+1}, s{T+1}, s{T+2}')
    e(f's_lshl_b32 s{T+2}, s{S_W}, 4')
    e(f's_add_u32 s{S_OO}, s{T+1}, s{T+2}')
    e(f'v_and_b32 v2, 31, v1')
    e(f'v_lshlrev_b32 v2, 10, v2')
    e(f'v_lshrrev_b32 v3, 5, v1')
    e(f'v_lshl_add_u32 v{V_OUT}, v3, 3, v2')
    e(f'v_lshlrev_b32 v{V_G2L16}, 4, v1')
    for q in range(1, 4):
        e(f's_add_u32 s{T+1}, s{S_W}, {q}')
        e(f's_and_b32 s{T+1}, s{T+1}, 3')
        e(f's_mul_i32 s{T+1}, s{T+1}, 3072')
        e(f's_add_u32 s{T+1}, s{T+1}, {L_S + (q-1)*1024}')
        e(f'v_add_u32 v{V_REDW+q-1}, s{T+1}, v{V_G2L16}')
    e(f's_mul_i32 s{T+1}, s{S_W}, 3072')
    e(f's_add_u32 s{T+1}, s{T+1}, {L_S}')
    e(f'v_add_u32 v{V_REDR}, s{T+1}, v{V_G2L16}')

def phase_g2(e, res_off, out_builder, sc='', budget=8):
    e.c('---- phase G2 ----')
    T = S_T0
    osrd, ooff = out_builder(e)
    ht = {}
    def hload(i):
        tb, ft = divmod(i, 28)
        if ft % 4 == 0:
            if i == 0:    e(f's_mov_b32 s{T}, s{S_HL}')
            elif ft == 0: e(f's_add_u32 s{T}, s{S_HL}, 114688')
            else:         e(f's_add_u32 s{T}, s{T}, 4096')
        r = G2_RING + 4 * (i % G2_NR)
        e(f'buffer_load_dwordx4 v[{r}:{r+3}], v{V_G2L16}, s[{R_WS}:{R_WS+3}], s{T} offen offset:{1024*(ft%4)} {sc}')
        ht[i] = e.vm
    for i in range(G2_NR): hload(i)
    RES = G2_TMP + 24
    e(f's_add_u32 s{T+1}, s{S_OO}, {res_off}')
    e(f's_add_u32 s{T+2}, s{T+1}, 32768')
    for tb in range(2):
        for cb in range(2):
            r = RES + (tb * 2 + cb) * 2
            e(f'buffer_load_dwordx2 v[{r}:{r+1}], v{V_OUT}, s[{R_WS}:{R_WS+3}], s{T+1+tb} offen offset:{64*cb} {sc}')
    tres = e.vm
    e(f's_add_u32 s{T+3}, s{S_OO}, {ooff}')
    e(f's_add_u32 s{T+4}, s{T+3}, 32768')
    e(f's_mov_b32 s{T+5}, {f32(LN2)}')
    e(f's_mov_b32 s{T+6}, 0xffff0000')
    def red_write(tb):
        L = []
        for cb in range(2):
            acc = G2_ACC + 16 * (tb * 2 + cb)
            for q in range(1, 4):
                L.append(f'ds_write_b128 v{V_REDW+q-1}, v[{acc+4*q}:{acc+4*q+3}] offset:{cb*12288}')
        return L
    def red_read():
        L = []
        for cb in range(2):
            for q in range(3):
                r = G2_TMP + (cb * 3 + q) * 4
                L.append(f'ds_read_b128 v[{r}:{r+3}], v{V_REDR} offset:{cb*12288+q*1024}')
        return L
    def finish(tb):
        L = []
        for cb in range(2):
            acc = G2_ACC + 16 * (tb * 2 + cb)
            P = G2_TMP + cb * 12
            for i in range(4): L.append(f'v_add_f32 v{P+i}, v{P+i}, v{P+4+i}')
            for i in range(4): L.append(f'v_add_f32 v{acc+i}, v{acc+i}, v{P+8+i}')
            for i in range(4): L.append(f'v_add_f32 v{acc+i}, v{acc+i}, v{P+i}')
            r = RES + (tb * 2 + cb) * 2
            L.append(f'v_lshlrev_b32 v{P}, 16, v{r}')
            L.append(f'v_and_b32 v{P+1}, s{T+6}, v{r}')
            L.append(f'v_lshlrev_b32 v{P+2}, 16, v{r+1}')
            L.append(f'v_and_b32 v{P+3}, s{T+6}, v{r+1}')
            for i in range(4): L.append(f'v_fma_f32 v{acc+i}, v{acc+i}, s{T+5}, v{P+i}')
            L.append(f'v_cvt_pk_bf16_f32 v{acc}, v{acc}, v{acc+1}')
            L.append(f'v_cvt_pk_bf16_f32 v{acc+1}, v{acc+2}, v{acc+3}')
            L.append(f'buffer_store_dwordx2 v[{acc}:{acc+1}], v{V_OUT}, s[{osrd}:{osrd+3}], s{T+3+tb} offen offset:{64*cb}')
        return L
    fill = deque()
    n = 112
    for i in range(n):
        tb, rem = divmod(i, 56)
        ft, cb = divmod(rem, 2)
        k = tb * 28 + ft
        used = 2
        if cb == 0:
            b = len(e.L); e.wvm(ht[k]); used += len(e.L) - b
        acc = G2_ACC + 16 * (tb * 2 + cb)
        a = (ft * 2 + cb) * 4
        r = G2_RING + 4 * (k % G2_NR)
        c = '0' if ft == 0 else f'v[{acc}:{acc+15}]'
        e(f'v_mfma_f32_32x32x16_bf16 v[{acc}:{acc+15}], a[{a}:{a+3}], v[{r}:{r+3}], {c}')
        if cb == 1 and k + G2_NR < 56:
            b = len(e.L); hload(k + G2_NR); used += len(e.L) - b
        if i == 58:
            for t in red_write(0): fill.append(t)
            fill.append('WAITLG'); fill.append('GAP'); fill.append('GAP'); fill.append('s_barrier')
            for t in red_read(): fill.append(t)
            fill.append('GAP'); fill.append('GAP'); fill.append('WAITLG'); fill.append('s_barrier'); fill.append('WAITRES')
            for t in finish(0): fill.append(t)
        while fill and used < budget:
            t = fill.popleft()
            if t == 'GAP': break
            if t == 'WAITLG': e.wall(vm=False)
            elif t == 'WAITRES': e.wvm(tres)
            else: e(t)
            used += 1
    while fill:
        t = fill.popleft()
        if t == 'GAP': continue
        if t == 'WAITLG': e.wall(vm=False)
        elif t == 'WAITRES': e.wvm(tres)
        else: e(t)
    for t in red_write(1): e(t)
    e.wall(vm=False)
    e('s_barrier')
    for t in red_read(): e(t)
    e.wall(vm=False)
    for t in finish(1): e(t)

def out_ws(off):
    def f(e): return R_WS, off
    return f
def out_final(e):
    srd(e, R_B, S_OUT, 0x200000)
    return R_B, 0
```

```python
from common import *

def phase_p(e):
    e.c('---- phase P ----')
    T = S_T0
    srd(e, R_A, S_K, 0x200000)
    srd(e, R_B, S_V, 0x200000)
    srd(e, R_C, S_SH, 4096)
    e(f'v_and_b32 v1, 31, v0')
    e(f'v_lshrrev_b32 v2, 5, v0')
    e(f's_lshl_b32 s{T}, s{S_G}, 7')
    e(f's_lshl_b32 s{T+1}, s{S_M}, 16')
    e(f's_add_u32 s{T}, s{T}, s{T+1}')
    e(f'v_lshl_add_u32 v3, v1, 2, s{T}')
    e(f'v_lshl_add_u32 v4, v2, 13, v3')
    e(f'v_subrev_u32 v5, 0xc00, v4')
    e(f's_movk_i32 s{T+2}, 0x1000')
    e(f's_lshl_b32 s{T+3}, s{S_G}, 9')
    e(f'v_lshl_add_u32 v6, v1, 4, s{T+3}')
    KR = 10
    VR = 22
    WR = 30
    e(f'buffer_load_dwordx4 v[{WR}:{WR+3}], v6, s[{R_C}:{R_C+3}], 0 offen')
    for i in range(3):
        e(f'buffer_load_dword v{KR+i}, v5, s[{R_A}:{R_A+3}], 0 offen offset:{1024*i}')
    for i in range(8):
        so = '0' if i < 4 else f's{T+2}'
        e(f'buffer_load_dword v{KR+3+i}, v4, s[{R_A}:{R_A+3}], {so} offen offset:{1024*(i&3)}')
    tk = e.vm
    for i in range(8):
        so = '0' if i < 4 else f's{T+2}'
        e(f'buffer_load_dword v{VR+i}, v4, s[{R_B}:{R_B+3}], {so} offen offset:{1024*(i&3)}')
    tv = e.vm
    e(f's_lshl_b32 s{T+3}, s{S_G}, 18')
    e(f's_lshl_b32 s{T+4}, s{S_M}, 7')
    e(f's_add_u32 s{T+3}, s{T+3}, s{T+4}')
    e(f'v_lshlrev_b32 v7, 13, v1')
    e(f'v_lshl_add_u32 v7, v2, 4, v7')
    e(f'v_add_u32 v7, s{T+3}, v7')
    e(f's_mov_b32 s{T+4}, {KVT}')
    e(f's_mov_b32 s{T+5}, {KVT + 4096}')
    e(f's_mov_b32 s{T+6}, 0xffff0000')
    KF = 40
    WF = 62
    AC = 70
    VF = 86
    e.wvm(tk)
    for j in range(4):
        for c in range(2):
            src = WR + 2 * c + (j >> 1)
            dst = WF + 2 * j + c
            if j & 1: e(f'v_and_b32 v{dst}, s{T+6}, v{src}')
            else:     e(f'v_lshlrev_b32 v{dst}, 16, v{src}')
    for r in range(11):
        e(f'v_lshlrev_b32 v{KF+2*r}, 16, v{KR+r}')
        e(f'v_and_b32 v{KF+2*r+1}, s{T+6}, v{KR+r}')
    for r in range(8):
        e(f'v_pk_mul_f32 v[{AC+2*r}:{AC+2*r+1}], v[{KF+2*(r+3)}:{KF+2*(r+3)+1}], v[{WF}:{WF+1}]')
    for j in range(1, 4):
        for r in range(8):
            k = KF + 2 * (r + 3 - j)
            e(f'v_pk_fma_f32 v[{AC+2*r}:{AC+2*r+1}], v[{k}:{k+1}], v[{WF+2*j}:{WF+2*j+1}], v[{AC+2*r}:{AC+2*r+1}]')
    e.wvm(tv)
    for r in range(8):
        e(f'v_lshlrev_b32 v{VF+2*r}, 16, v{VR+r}')
        e(f'v_and_b32 v{VF+2*r+1}, s{T+6}, v{VR+r}')
    for r in range(8):
        e(f'v_pk_mul_f32 v[{AC+2*r}:{AC+2*r+1}], v[{AC+2*r}:{AC+2*r+1}], v[{VF+2*r}:{VF+2*r+1}]')
    O = 104
    for c in range(2):
        for i in range(4):
            e(f'v_cvt_pk_bf16_f32 v{O+4*c+i}, v{AC+4*i+c}, v{AC+4*i+2+c}')
    e(f'buffer_store_dwordx4 v[{O}:{O+3}], v7, s[{R_WS}:{R_WS+3}], s{T+4} offen')
    e(f'buffer_store_dwordx4 v[{O+4}:{O+7}], v7, s[{R_WS}:{R_WS+3}], s{T+5} offen')
```

```python
from common import *

def r_y_dma(e, T, sc=''):
    e(f'v_lshrrev_b32 v2, 4, v1')
    e(f'v_lshlrev_b32 v3, 2, v2')
    e(f'v_sub_u32 v3, v1, v3')
    e(f'v_and_b32 v3, 15, v3')
    e(f'v_lshlrev_b32 v3, 6, v3')
    e(f'v_lshl_add_u32 v3, v2, 10, v3')
    e(f's_lshr_b32 s{T}, s{S_M}, 2')
    e(f's_lshl_b32 s{T+1}, s{S_G}, 3')
    e(f's_add_u32 s{T}, s{T}, s{T+1}')
    e(f's_lshl_b32 s{T}, s{T}, 15')
    e(f's_lshl_b32 s{T+1}, s{S_W}, 13')
    e(f's_add_u32 s{T}, s{T}, s{T+1}')
    e(f's_and_b32 s{T+1}, s{S_M}, 3')
    e(f's_lshl_b32 s{T+1}, s{T+1}, 4')
    e(f's_add_u32 s{T}, s{T}, s{T+1}')
    e(f's_add_u32 s{T}, s{T}, {YB}')
    e(f's_lshl_b32 s{T+1}, s{S_W}, 11')
    e(f's_add_u32 m0, s{T+1}, {L_Y}')
    e(f's_add_u32 s{T+2}, s{T}, 4096')
    e(f'buffer_load_dwordx4 v3, s[{R_WS}:{R_WS+3}], s{T} offen {sc} lds')
    e(f's_add_u32 m0, m0, 1024')
    e(f's_nop 0')
    e(f'buffer_load_dwordx4 v3, s[{R_WS}:{R_WS+3}], s{T+2} offen {sc} lds')
    return e.vm

def r_stats(e, X, A, ex_off, vEXW, vEXR, first):
    S, Q = A + 2, A + 4
    e(f'v_pk_add_f32 v[{S}:{S+1}], v[{X}:{X+1}], v[{X+2}:{X+3}]')
    e(f'v_pk_mul_f32 v[{Q}:{Q+1}], v[{X}:{X+1}], v[{X}:{X+1}]')
    for k in range(1, 8):
        if k >= 2: e(f'v_pk_add_f32 v[{S}:{S+1}], v[{S}:{S+1}], v[{X+2*k}:{X+2*k+1}]')
        e(f'v_pk_fma_f32 v[{Q}:{Q+1}], v[{X+2*k}:{X+2*k+1}], v[{X+2*k}:{X+2*k+1}], v[{Q}:{Q+1}]')
    e(f'v_add_f32 v{S}, v{S}, v{S+1}')
    e(f'v_add_f32 v{Q}, v{Q}, v{Q+1}')
    e(f's_nop 0')
    e(f'v_add_f32_dpp v{S}, v{S}, v{S} row_ror:8 row_mask:0xf bank_mask:0xf')
    e(f'v_add_f32_dpp v{Q}, v{Q}, v{Q} row_ror:8 row_mask:0xf bank_mask:0xf')
    e(f'v_permlane16_swap_b32 v{S}, v{Q}')
    e(f'v_add_f32 v{S}, v{S}, v{Q}')
    e(f'v_mov_b32 v{Q}, v{S}')
    e(f'v_permlane32_swap_b32 v{S}, v{Q}')
    e(f'v_add_f32 v{S}, v{S}, v{Q}')
    e(f'ds_write_b32 v{vEXW}, v{S} offset:{ex_off}')
    e.wall(vm=False)
    e('s_barrier')
    e(f'ds_read_b128 v[{A+2}:{A+5}], v{vEXR} offset:{ex_off}')
    e(f'ds_read_b128 v[{A+6}:{A+9}], v{vEXR} offset:{ex_off+16}')
    e.wall(vm=False)
    e(f'v_pk_add_f32 v[{A+2}:{A+3}], v[{A+2}:{A+3}], v[{A+4}:{A+5}]')
    e(f'v_pk_add_f32 v[{A+6}:{A+7}], v[{A+6}:{A+7}], v[{A+8}:{A+9}]')
    e(f'v_add_f32 v{A+2}, v{A+2}, v{A+3}')
    e(f'v_add_f32 v{A+6}, v{A+6}, v{A+7}')
    e(f'v_mul_f32 v{A}, {f32(1/512)}, v{A+2}')
    e(f'v_mul_f32 v{A+6}, {f32(1/512)}, v{A+6}')
    e(f'v_fma_f32 v{A+6}, -v{A}, v{A}, v{A+6}')
    e(f'v_max_f32 v{A+6}, 0, v{A+6}')
    e(f'v_add_f32 v{A+6}, {f32(1e-5)}, v{A+6}')
    e(f'v_rsq_f32 v{A+1}, v{A+6}')

def phase_r(e, src_srd_builder, src_off, dst_res, sc='', y_preloaded=False):
    e.c('---- phase R ----')
    T = S_T0
    e(f'v_and_b32 v1, 63, v0')
    ty = None
    if not y_preloaded:
        ty = r_y_dma(e, T, sc)
    rs = src_srd_builder(e)
    e(f'v_and_b32 v4, 7, v1')
    e(f'v_lshrrev_b32 v5, 3, v1')
    e(f'v_lshlrev_b32 v6, 10, v4')
    e(f'v_lshl_add_u32 v6, v5, 5, v6')
    e(f's_lshl_b32 s{T+4}, s{S_G}, 18')
    e(f's_lshl_b32 s{T+5}, s{S_M}, 13')
    e(f's_add_u32 s{T+4}, s{T+4}, s{T+5}')
    e(f's_lshl_b32 s{T+5}, s{S_W}, 8')
    e(f's_add_u32 s{T+4}, s{T+4}, s{T+5}')
    e(f's_add_u32 s{T+5}, s{T+4}, {src_off}')
    XR = 8
    e(f'buffer_load_dwordx4 v[{XR}:{XR+3}], v6, s[{rs}:{rs+3}], s{T+5} offen {sc}')
    e(f'buffer_load_dwordx4 v[{XR+4}:{XR+7}], v6, s[{rs}:{rs+3}], s{T+5} offen offset:16 {sc}')
    tx = e.vm
    e(f'v_lshrrev_b32 v2, 4, v1')
    e(f'v_bfe_u32 v3, v1, 1, 1')
    e(f'v_lshl_add_u32 v2, v2, 1, v3')
    e(f'v_bfe_u32 v3, v1, 2, 2')
    e(f'v_lshlrev_b32 v7, 8, v2')
    e(f'v_lshl_add_u32 v7, v3, 4, v7')
    e(f'v_and_b32 v3, 1, v1')
    e(f'v_lshl_add_u32 v7, v3, 3, v7')
    e(f's_lshl_b32 s{T+6}, s{S_W}, 11')
    e(f's_add_u32 s{T+6}, s{T+6}, {L_Y}')
    e(f'v_add_u32 v7, s{T+6}, v7')
    YA = 16
    for jj in range(4):
        e(f'v_add_u32 v3, {jj}, v2')
        e(f'v_and_b32 v3, 3, v3')
        e(f'v_lshl_add_u32 v{YA+jj}, v3, 6, v7')
    e(f'v_bfe_u32 v3, v1, 4, 1')
    e(f'v_lshlrev_b32 v20, 5, v4')
    e(f'v_add_u32 v21, {L_S}, v20')
    e(f'v_lshl_add_u32 v20, v3, 4, v21')
    e(f's_lshl_b32 s{T+6}, s{S_W}, 2')
    e(f'v_add_u32 v20, s{T+6}, v20')
    e(f'v_lshlrev_b32 v22, 4, v4')
    e(f'v_lshl_add_u32 v22, v5, 10, v22')
    e(f's_lshr_b32 s{T+6}, s{S_M}, 2')
    e(f's_lshl_b32 s{T+7}, s{S_G}, 3')
    e(f's_add_u32 s{T+6}, s{T+6}, s{T+7}')
    e(f's_lshl_b32 s{T+6}, s{T+6}, 15')
    e(f's_lshl_b32 s{T+7}, s{S_W}, 13')
    e(f's_add_u32 s{T+6}, s{T+6}, s{T+7}')
    e(f's_and_b32 s{T+7}, s{S_M}, 3')
    e(f's_lshl_b32 s{T+7}, s{T+7}, 7')
    e(f's_add_u32 s{T+6}, s{T+6}, s{T+7}')
    e(f's_add_u32 s{T+6}, s{T+6}, {XN}')
    e(f's_add_u32 s{T+7}, s{T+4}, {dst_res}')
    e(f's_mov_b32 s{T+8}, 0xffff0000')
    X = 24
    Y = 40
    YF = 48
    A = 64
    e.wvm(tx)
    for i in range(8):
        e(f'v_lshlrev_b32 v{X+2*i}, 16, v{XR+i}')
        e(f'v_and_b32 v{X+2*i+1}, s{T+8}, v{XR+i}')
    if ty is not None: e.wvm(ty)
    for jj in range(4):
        e(f'ds_read_b64_tr_b16 v[{Y+2*jj}:{Y+2*jj+1}], v{YA+jj}')
    r_stats(e, X, A, 0, 20, 21, True)
    for i in range(8):
        e(f'v_lshlrev_b32 v{YF+2*i}, 16, v{Y+i}')
        e(f'v_and_b32 v{YF+2*i+1}, s{T+8}, v{Y+i}')
    e(f'v_mul_f32 v{A+2}, v{A}, v{A+1}')
    e(f'v_mov_b32 v{A}, v{A+1}')
    e(f'v_sub_f32 v{A+2}, 0, v{A+2}')
    e(f'v_mov_b32 v{A+3}, v{A+2}')
    TT = 76
    for k in range(8):
        e(f'v_pk_fma_f32 v[{TT+2*k}:{TT+2*k+1}], v[{X+2*k}:{X+2*k+1}], v[{A}:{A+1}], v[{A+2}:{A+3}]')
    for k in range(8):
        e(f'v_pk_fma_f32 v[{X+2*k}:{X+2*k+1}], v[{TT+2*k}:{TT+2*k+1}], v[{YF+2*k}:{YF+2*k+1}], v[{X+2*k}:{X+2*k+1}]')
    for k in range(8):
        e(f'v_cvt_pk_bf16_f32 v{XR+k}, v{X+2*k}, v{X+2*k+1}')
    e(f'buffer_store_dwordx4 v[{XR}:{XR+3}], v6, s[{R_WS}:{R_WS+3}], s{T+7} offen')
    e(f'buffer_store_dwordx4 v[{XR+4}:{XR+7}], v6, s[{R_WS}:{R_WS+3}], s{T+7} offen offset:16')
    r_stats(e, X, A, 256, 20, 21, False)
    e(f'v_mul_f32 v{A+1}, {f32(LOG2E)}, v{A+1}')
    e(f'v_mul_f32 v{A+2}, v{A}, v{A+1}')
    e(f'v_mov_b32 v{A}, v{A+1}')
    e(f'v_sub_f32 v{A+2}, 0, v{A+2}')
    e(f'v_mov_b32 v{A+3}, v{A+2}')
    for k in range(8):
        e(f'v_pk_fma_f32 v[{TT+2*k}:{TT+2*k+1}], v[{X+2*k}:{X+2*k+1}], v[{A}:{A+1}], v[{A+2}:{A+3}]')
    for k in range(8):
        e(f'v_cvt_pk_bf16_f32 v{Y+k}, v{TT+2*k}, v{TT+2*k+1}')
    e(f'buffer_store_dwordx4 v[{Y}:{Y+3}], v22, s[{R_WS}:{R_WS+3}], s{T+6} offen')
    e(f'buffer_store_dwordx4 v[{Y+4}:{Y+7}], v22, s[{R_WS}:{R_WS+3}], s{T+6} offen offset:512')

def src_q(e):
    srd(e, R_A, S_Q, 0x200000)
    return R_A
def src_ws(e):
    return R_WS
```

```python
import sys
from common import *
from ph_p import phase_p
from ph_c import phase_c
from ph_r import phase_r, src_q, src_ws
from ph_g1 import *
from ph_g2 import *

def make_kernel(name, body):
    e = E()
    end = f'{name}_end'
    prologue(e, end)
    body(e)
    e.label(end)
    e('s_endpgm')
    L, rep = e.text()
    return L, rep

def build(kernels, launches, path):
    out = []
    for (k, lds) in launches:
        out.append(f'; @launch kernel={k} grid=(256,1,1) block=(256,1,1) lds={lds}')
    out.append('.amdgcn_target "amdgcn-amd-amdhsa--gfx950"')
    out.append('.text')
    tot = 0
    for name, body in kernels:
        L, rep = make_kernel(name, body)
        nn = sum(1 for l in L if l.startswith('s_nop') and 'haz' in l)
        n = sum(1 for l in L if not l.startswith(';') and not l.endswith(':'))
        tot += n
        print(f'{name}: {n} instrs, {nn} hazard nops', file=sys.stderr)
        out.append(kernel_text(name, L))
    out.append('.section .rodata,"a"')
    for name, body in kernels:
        out.append(kernel_desc(name))
    open(path, 'w').write('\n'.join(out) + '\n')

if __name__ == '__main__':
    which = sys.argv[1]; path = sys.argv[2]
    if which == 'pc':
        build([('kp_kernel', phase_p), ('kc_kernel', phase_c)],
              [('kp_kernel', 0), ('kc_kernel', 163840)], path)
    if which == 'pcr':
        build([('kp_kernel', phase_p), ('kc_kernel', phase_c), ('kr1_kernel', lambda e: phase_r(e, src_q, 0, X1))],
              [('kp_kernel', 0), ('kc_kernel', 163840), ('kr1_kernel', 163840)], path)
    def k_g1(e):
        e('v_and_b32 v1, 63, v0')
        w1_dma(e, S_T0)
        g1_setup(e, S_T0)
        e.wall(); e('s_barrier')
        phase_g1(e)
    if which == 'g1':
        build([('kp_kernel', phase_p), ('kc_kernel', phase_c), ('kr1_kernel', lambda e: phase_r(e, src_q, 0, X1)), ('kg1_kernel', k_g1)],
              [('kp_kernel', 0), ('kc_kernel', 163840), ('kr1_kernel', 163840), ('kg1_kernel', 163840)], path)
    def k_g2(res, ob):
        def f(e):
            e('v_and_b32 v1, 63, v0')
            w2_load_standalone(e, S_T0)
            e('s_barrier')
            g2_setup(e, S_T0)
            phase_g2(e, res, ob)
        return f
    if which == 'all8':
        build([('kp_kernel', phase_p), ('kc_kernel', phase_c), ('kr1_kernel', lambda e: phase_r(e, src_q, 0, X1)), ('kg1_kernel', k_g1),
               ('kg2a_kernel', k_g2(X1, out_ws(X2))), ('kr2_kernel', lambda e: phase_r(e, src_ws, X2, X3)), ('kg2b_kernel', k_g2(X3, out_final))],
              [('kp_kernel', 0), ('kc_kernel', 163840), ('kr1_kernel', 163840), ('kg1_kernel', 163840), ('kg2a_kernel', 163840),
               ('kr2_kernel', 163840), ('kg1_kernel', 163840), ('kg2b_kernel', 163840)], path)
```
